```python
import torch

def _softmax(x, axis=-1):
    return torch.softmax(x, dim=axis)

def _gelu(x):
    return torch.nn.functional.gelu(x, approximate='tanh')

def _silu(x):
    return torch.nn.functional.silu(x)

def _sigmoid(x):
    return torch.sigmoid(x)

def _layernorm(x, axis=-1, eps=1e-05):
    m = x.mean(dim=axis, keepdim=True)
    v = x.var(dim=axis, keepdim=True, unbiased=False)
    return (x - m) / torch.sqrt(v + eps)

def _scatter_add(tgt, idx, src, axis=0):
    return tgt.clone().index_add_(axis, idx, src)

def _segment_sum(src, seg, n):
    out = torch.zeros((n,) + src.shape[1:], dtype=src.dtype)
    return out.index_add_(0, seg, src)

def _pad(x, pw):
    flat = tuple((v for pair in reversed(pw) for v in pair))
    return torch.nn.functional.pad(x, flat)
kernel_name = 'adaLN_cond__sliding_block_cached__geglu_ffn__decode'

def setup_inputs():

    _w = lambda a: (lambda t: t.to(torch.bfloat16) if t.is_floating_point() else t)(torch.as_tensor(a))

    def _A_setup():
        B, Sq, D = (1, 1, 640)
        Hq, Hkv, Sk, Dh = (32, 32, 32768, 192)
        assert Hq % Hkv == 0, (Hq, Hkv)
        return {'x': _w((lambda *s: torch.randn(*s, dtype=torch.bfloat16) * 0.1)(B, Sq, D)), 'k_cache': _w((lambda *s: torch.randn(*s, dtype=torch.bfloat16) * 0.8)(B, Hkv, Sk, Dh)), 'v_cache': _w((lambda *s: torch.randn(*s, dtype=torch.bfloat16) * 1.6)(B, Hkv, Sk, Dh)), 'wq': _w((lambda *s: torch.randn(*s, dtype=torch.bfloat16) * 0.8)(D, Hq * Dh) * D ** (-0.5)), 'wo': _w((lambda *s: torch.randn(*s, dtype=torch.bfloat16) * 1.6)(Hq * Dh, D) * (Hq * Dh) ** (-0.5))}
    _A_in = _A_setup()

    def _B_setup():
        B, S, D, F = (1, 1, 640, 1536)
        return {'x': _w((lambda *s: torch.randn(*s, dtype=torch.bfloat16) * 0.1)(B, S, D)), 'w_gate': _w((lambda *s: torch.randn(*s, dtype=torch.bfloat16) * 0.1)(D, F)), 'w_up': _w((lambda *s: torch.randn(*s, dtype=torch.bfloat16) * 0.1)(D, F)), 'w_down': _w((lambda *s: torch.randn(*s, dtype=torch.bfloat16) * 0.1)(F, D))}
    _B_in = _B_setup()
    return {'A_x': _A_in['x'], 'A_k_cache': _A_in['k_cache'], 'A_v_cache': _A_in['v_cache'], 'A_wq': _A_in['wq'], 'A_wo': _A_in['wo'], 'B_x': _B_in['x'], 'B_w_gate': _B_in['w_gate'], 'B_w_up': _B_in['w_up'], 'B_w_down': _B_in['w_down'], 'c': _w((lambda *s: torch.randn(*s, dtype=torch.bfloat16) * 0.8)(1, 640) * 8.0), 'w_mod': _w((lambda *s: torch.randn(*s, dtype=torch.bfloat16) * 0.8)(640, 6 * 640) * 640 ** (-0.5) * 8.0)}

def reference(A_x, A_k_cache, A_v_cache, A_wq, A_wo, B_x, B_w_gate, B_w_up, B_w_down, c, w_mod):

    def _A_ref(x, k_cache, v_cache, wq, wo):
        B, Sq, D = x.shape
        Hq, Dh = (32, 192)
        Hkv, Sk = (k_cache.shape[1], k_cache.shape[2])
        W = min(4096, max(256, Sk // 4))
        rep = Hq // Hkv
        q = (lambda x, *d: x.permute(*d))((x @ wq).reshape(B, Sq, Hq, Dh), 0, 2, 1, 3)
        k = (lambda x, n, axis: torch.repeat_interleave(x, n, dim=axis))(k_cache[:, :, Sk - W:, :], rep, axis=1)
        v = (lambda x, n, axis: torch.repeat_interleave(x, n, dim=axis))(v_cache[:, :, Sk - W:, :], rep, axis=1)
        scores = torch.einsum('bhqd,bhkd->bhqk', q, k) * Dh ** (-0.5)
        p = _softmax(scores, axis=-1)
        o = torch.einsum('bhqk,bhkd->bhqd', p, v)
        return (lambda x, *d: x.permute(*d))(o, 0, 2, 1, 3).reshape(B, Sq, Hq * Dh) @ wo

    def _B_ref(x, w_gate, w_up, w_down):
        return _gelu(x @ w_gate) * (x @ w_up) @ w_down
    x = A_x
    mod = (_silu(c) @ w_mod).reshape(c.shape[0], 6, 1, -1)
    sa, ca, ga, sb, cb, gb = (mod[:, 0].clone(), mod[:, 1].clone(), mod[:, 2].clone(), mod[:, 3].clone(), mod[:, 4].clone(), mod[:, 5].clone())
    h = _layernorm(x, axis=-1) * (1 + ca) + sa
    x = x + ga * _A_ref(h, A_k_cache, A_v_cache, A_wq, A_wo)
    h = _layernorm(x, axis=-1) * (1 + cb) + sb
    x = x + gb * _B_ref(h, B_w_gate, B_w_up, B_w_down)
    return x
```

```python
import re

TRANS = ("v_exp_f32", "v_log_f32", "v_rcp_f32", "v_rsq_f32", "v_sqrt_f32", "v_sin_f32", "v_cos_f32")

def _regs(tok):
    tok = tok.strip()
    tok = re.sub(r"^-", "", tok)
    m = re.match(r"^abs\((.*)\)$", tok)
    if m: tok = m.group(1)
    m = re.match(r"^\|(.*)\|$", tok)
    if m: tok = m.group(1)
    m = re.match(r"^([vsa])\[(\d+):(\d+)\]$", tok)
    if m:
        return [f"{m.group(1)}{i}" for i in range(int(m.group(2)), int(m.group(3)) + 1)]
    m = re.match(r"^([vsa])(\d+)$", tok)
    if m: return [tok]
    if tok in ("vcc", "vcc_lo", "vcc_hi"): return ["vcc"]
    if tok in ("exec", "exec_lo", "exec_hi"): return ["exec"]
    if tok == "m0": return ["m0"]
    return []

class Ins:
    def __init__(self, text):
        self.text = text
        t = text.split(";")[0].strip()
        self.is_label = t.endswith(":")
        self.is_dir = t.startswith(".") or t == ""
        self.op = ""; self.w = []; self.r = []
        if self.is_label or self.is_dir: return
        parts = t.split(None, 1)
        self.op = parts[0]
        rest = parts[1] if len(parts) > 1 else ""
        ops = []
        depth = 0; cur = ""
        for ch in rest:
            if ch == "[" or ch == "(": depth += 1
            if ch == "]" or ch == ")": depth -= 1
            if ch == "," and depth == 0:
                ops.append(cur.strip()); cur = ""
            else: cur += ch
        if cur.strip(): ops.append(cur.strip())
        mods = ""
        if ops:
            sp = ops[-1].split(None, 1)
            ops[-1] = sp[0]
            mods = sp[1] if len(sp) > 1 else ""
        self.ops = ops; self.mods = mods
        op = self.op
        self.valu = op.startswith("v_")
        self.mfma = op.startswith("v_mfma")
        self.dot = op.startswith("v_dot")
        self.trans = any(op.startswith(x) for x in TRANS)
        self.dpp = "_dpp" in op or any(k in mods for k in ("quad_perm", "row_", "wave_"))
        self.sdwa = "_sdwa" in op
        self.permlane = op.startswith("v_permlane")
        self.readlane = op.startswith("v_readlane") or op.startswith("v_readfirstlane") or op.startswith("v_writelane")
        self.vmem = op.startswith("global_") or op.startswith("buffer_") or op.startswith("flat_")
        self.ds = op.startswith("ds_")
        self.salu = op.startswith("s_")
        R = lambda i: _regs(ops[i]) if i < len(ops) else []
        allr = lambda a: [x for i in range(a, len(ops)) for x in R(i)]
        if self.valu:
            if self.permlane:
                self.w = R(0) + R(1); self.r = R(0) + R(1)
            elif op.startswith("v_cmpx"):
                self.w = R(0) + ["exec"]; self.r = allr(1)
            elif op.startswith("v_cmp"):
                self.w = R(0); self.r = allr(1)
            elif re.match(r"v_(add|sub|subrev)_co_u32", op) or op.startswith("v_div_scale") or op.startswith("v_mad_u64"):
                self.w = R(0) + R(1); self.r = allr(2)
            elif re.match(r"v_(addc|subb|subbrev)_co_u32", op):
                self.w = R(0) + R(1); self.r = allr(2)
            elif op.startswith("v_nop"):
                pass
            else:
                self.w = R(0); self.r = allr(1)
                if op.startswith("v_fmac") or op.startswith("v_dot2c") or op.startswith("v_writelane") or self.dpp or self.sdwa or op.startswith("v_pk_fmac"):
                    self.r += R(0)
                if op.startswith("v_cndmask") and len(ops) == 3: self.r += ["vcc"]
                if op.startswith("v_div_fmas"): self.r += ["vcc"]
            if self.mfma:
                self.D = R(0); self.A = R(1); self.B = R(2); self.C = R(3)
        elif self.vmem:
            lds = ("_lds_" in op) or (" lds" in (" " + mods))
            if "load" in op and not lds:
                self.w = R(0); self.r = allr(1)
            elif "atomic" in op and "sc0" in mods:
                self.w = R(0); self.r = allr(1)
            else:
                self.r = allr(0)
                if lds: self.r += ["m0"]
            self.ldsdma = lds
            self.store_data = []
            if "store" in op and ("x4" in op or "x3" in op):
                self.store_data = R(1) if op.startswith("global_") else R(0)
        elif self.ds:
            if op.startswith("ds_read") or "rtn" in op or "permute" in op or "swizzle" in op:
                self.w = R(0); self.r = allr(1)
            else:
                self.r = allr(0)
        elif self.salu:
            if op.startswith("s_cmp") or op.startswith("s_cbranch") or op.startswith("s_branch") or op in ("s_waitcnt", "s_nop", "s_barrier", "s_sleep", "s_setprio", "s_endpgm") or op.startswith("s_bitcmp"):
                self.r = allr(0)
            else:
                self.w = R(0); self.r = allr(1)
                if "saveexec" in op: self.w += ["exec"]
    def states(self):
        if self.is_label or self.is_dir: return 0
        if self.op == "s_nop": return int(self.ops[0], 0) + 1
        return 1

def need(p, c):
    n = 0
    pw = set(p.w); cr = set(c.r); cw = set(c.w)
    vw = {x for x in pw if x[0] in "va" and x not in ("vcc",)}
    sw = pw - vw
    if p.valu and not p.mfma:
        if vw & cr:
            if c.valu and c.dpp: n = max(n, 2)
            if c.valu and c.permlane: n = max(n, 2)
            if c.valu and c.readlane: n = max(n, 1)
            if c.valu and c.mfma: n = max(n, 2)
            if p.trans and c.valu and not c.trans: n = max(n, 1)
            if p.trans and (c.vmem or c.ds): n = max(n, 1)
            if p.sdwa and c.valu: n = max(n, 1)
        if p.dot and (vw & (cr | cw)):
            if c.valu and c.op == p.op:
                ab = set(_regs(c.ops[1]) + _regs(c.ops[2]))
                if vw & ab: n = max(n, 3)
            else: n = max(n, 3)
        if sw & cr:
            if c.valu: n = max(n, 4 if c.readlane else 2)
            if c.vmem: n = max(n, 5)
            if c.valu and c.op.startswith("v_div_fmas"): n = max(n, 4)
        if "exec" in sw:
            if c.valu and c.dpp: n = max(n, 5)
            if c.valu and (c.readlane or c.permlane or c.mfma): n = max(n, 4)
    if p.valu and p.mfma:
        passes = 8 if "32x32" in p.op else 4
        big = {4: 8, 8: 12}[passes]; ovl = {4: 6, 8: 10}[passes]; war = {4: 3, 8: 7}[passes]
        D = set(p.D)
        if c.valu and c.mfma:
            if D & (set(c.A) | set(c.B)): n = max(n, big)
            if D & set(c.C) and c.C != p.D: n = max(n, ovl)
            if D & set(c.D) and c.C != p.D: n = max(n, ovl)
        elif (c.valu or c.vmem or c.ds) and (D & (cr | cw)): n = max(n, big)
        if c.valu and not c.mfma and (set(p.C) & cw): n = max(n, war)
    if p.salu and "m0" in pw and c.vmem and getattr(c, "ldsdma", False): n = max(n, 1)
    if p.vmem and getattr(p, "store_data", None):
        if set(p.store_data) & cw: n = max(n, 2)
    if p.ds and p.op.startswith("ds_write") and ("b128" in p.op or "b96" in p.op):
        pass
    return n

class Asm:
    def __init__(self):
        self.lines = []
    def __call__(self, text):
        for t in text.split("\n"):
            t = t.rstrip()
            if t.strip(): self.lines.append(t if (t.strip().endswith(":") or t.strip().startswith(".") or t.strip().startswith(";")) else "  " + t.strip())
    def finish(self):
        out = []; hist = []
        for t in self.lines:
            if t.strip().startswith(";"):
                out.append(t); continue
            ins = Ins(t)
            if ins.is_label or ins.is_dir:
                out.append(t); continue
            req = 0; dist = 0
            for p in reversed(hist[-24:]):
                nd = need(p, ins)
                if nd > dist: req = max(req, nd - dist)
                dist += p.states()
                if dist >= 20: break
            while req > 0:
                k = min(req, 16)
                nop = Ins(f"s_nop {k-1}")
                out.append(f"  s_nop {k-1}"); hist.append(nop); req -= k
            out.append(t); hist.append(ins)
        return "\n".join(out) + "\n"
```

```python
import sys, struct
import numpy as np
from asmlib import Asm
NAME = "adaLN_cond__sliding_block_cached__geglu_ffn__decode"
def f2u(x): return struct.unpack("<I", struct.pack("<f", np.float32(x)))[0]

WS_MOD = 0x1000
WS_QP  = 0x20000
WS_ST  = 0x50000
WS_OP  = 0x60000
WS_GP  = 0x90000
GP_K = 24 * 1536; GP_X = 3 * GP_K
WS_GS  = 0x168000
WS_PL  = 0x174000
WS_ZP  = 0x178000
WS_YP  = 0x1B4000
WS_STAMP = 0x1000000
assert WS_GP + 8 * GP_X <= WS_GS and WS_ZP + 96 * 2560 <= WS_YP
L_QW = 0; L_Q = 30720; L_FLG = 31232; L_STT = 31360; L_SC = 31744; L_MW = 33792; L_GC = 54272
L_T = L_GC + 1280; L_STAMP = L_GC + 1536; L_X1 = L_GC + 2048; L_C = L_GC + 2304; LDS_BYTES = L_GC + 2816
L_WRED = 0; WST = 576; L_VRED = 8192; VST = 1600
L_QF = L_FLG; L_FM = L_FLG + 4; L_FQ = L_FLG + 8; L_MODE = L_FLG + 12; L_PF = L_FLG + 16; L_VI = L_FLG + 48; L_KI = L_FLG + 80; L_QPUB = L_FLG + 112
GLIM = 1500000; LLIM = 1 << 24

DPP = "row_mask:0xf bank_mask:0xf"
X1 = "quad_perm:[1,0,3,2] " + DPP
X2 = "quad_perm:[2,3,0,1] " + DPP
HM = "row_half_mirror " + DPP
HMLO = "row_half_mirror row_mask:0xf bank_mask:0x5"
HMHI = "row_half_mirror row_mask:0xf bank_mask:0xa"
R8 = "row_ror:8 " + DPP
R4 = "row_ror:4 " + DPP

sX, sC, sOUT, sWS = "s[16:17]", "s[34:35]", "s[38:39]", "s[42:43]"
MODE = "s66"
TAG = "s44"; SEL = ["s45", "s46", "s47", "s48"]; TB = ["s49", "s50", "s51", "s60"]; M16 = "s52"; LOG2E = "s53"; SCALE = "s54"; SPIN = "s55"

def vr(a, n): return f"v[{a}:{a+n-1}]"

HEADER = """; adaLN-conditioned decode block: mod = silu(c) @ w_mod ; x += ga * attn(LN(x)*(1+ca)+sa) ; x += gb * GEGLU(LN(x)*(1+cb)+sb)
; Kernarg: 0 x, 8 k, 16 v, 24 wq, 32 wo, 40 B_x (unused), 48 gate, 56 up, 64 down, 72 c, 80 w_mod, 88 out, 96 debug, 104 ws"""

def gen(debug=False, force_slow=False, cap=3, ksig=22, vfree=3, pd_y=2, pd_g=2):
    a = Asm()
    nt = "nt"
    uid = [0]
    def lab(p):
        uid[0] += 1
        return f"L_{p}_{uid[0]}"
    def cm(t): a("; " + t)
    def stamp(n):
        if debug: a(f"s_memrealtime s[{70+2*n}:{71+2*n}]")
    def rnd(regs):
        for r in regs: a(f"v_cvt_pk_bf16_f32 v{r}, v{r}, v{r}")
        for r in regs: a(f"v_and_b32 v{r}, {M16}, v{r}")
    def dppred(regs, pats, op="add"):
        for pat in pats:
            for r in regs: a(f"v_{op}_f32_dpp v{r}, v{r}, v{r} {pat}")
    def allred8(regs, op="add"): dppred(regs, (X1, X2, HM), op)
    def swapred(regs, tmps, sws, op="add"):
        for sw in sws:
            for r, t in zip(regs, tmps): a(f"v_mov_b32 v{t}, v{r}")
            for r, t in zip(regs, tmps): a(f"v_permlane{sw}_swap_b32 v{r}, v{t}")
            for r, t in zip(regs, tmps): a(f"v_{op}_f32 v{r}, v{r}, v{t}")
    def allred_hi(regs, tmps, op="add"):
        dppred(regs, (R8,), op); swapred(regs, tmps, (16, 32), op)
    def redscat(bases):
        for b in bases:
            for o in range(2): a(f"v_add_f32_dpp v{b+o}, v{b+o}, v{b+o} {HMLO}")
        for b in bases:
            for o in range(2): a(f"v_add_f32_dpp v{b+o}, v{b+2+o}, v{b+2+o} {HMHI}")
        dppred([b + o for b in bases for o in range(2)], (X1, X2))
    def swapscat(b):
        a(f"v_permlane32_swap_b32 v{b}, v{b+2}"); a(f"v_permlane32_swap_b32 v{b+1}, v{b+3}")
        a(f"v_add_f32 v{b}, v{b}, v{b+2}"); a(f"v_add_f32 v{b+1}, v{b+1}, v{b+3}")
        a(f"v_permlane16_swap_b32 v{b}, v{b+1}")
        a(f"v_add_f32 v{b}, v{b}, v{b+1}")
    def pkadd(d, s):
        for r in (0, 2): a(f"v_pk_add_f32 {vr(d+r,2)}, {vr(d+r,2)}, {vr(s+r,2)}")
    def sum3(b):
        pkadd(b, b + 4); pkadd(b, b + 8)
    def abuild(dst, p):
        for r in range(4): a(f"v_and_b32 v{dst+r}, v{p}, v{4+r}")
    def abuild_h(dst, p, ch):
        for r in range(4):
            if (r >> 1) == ch: a(f"v_and_b32 v{dst+r}, v{p}, v{4+r}")
            else: a(f"v_and_b32_dpp v{dst+r}, v{p}, v{4+r} {HM}")
    def mfma(acc, A, B, first=False):
        c = "0" if first else vr(acc, 4)
        a(f"v_mfma_f32_16x16x32_bf16 {vr(acc,4)}, {vr(A,4)}, {vr(B,4)}, {c}")
    def chain(builds, do_mfma, A0=24):
        n = len(builds)
        builds[0](A0)
        for i in range(n):
            if i + 1 < n: builds[i + 1](A0 + 4 * ((i + 1) % 2))
            do_mfma(i, A0 + 4 * (i % 2))
    def exec_set(mask):
        a(f"s_mov_b32 exec_lo, {mask & 0xffffffff:#x}"); a(f"s_mov_b32 exec_hi, {mask >> 32:#x}")
    def exec_all(): a("s_mov_b64 exec, -1")
    def retry(l0):
        a(f"s_add_u32 {SPIN}, {SPIN}, 1")
        a(f"s_cmp_lt_u32 {SPIN}, {GLIM}")
        a(f"s_cbranch_scc1 {l0}")
    def gpoll(loads, check, sleep=0):
        l0 = lab("gp"); l1 = lab("gpd")
        a(f"s_mov_b32 {SPIN}, 0")
        a(f"{l0}:")
        loads(); a("s_waitcnt vmcnt(0)")
        check()
        a(f"s_cbranch_vccz {l1}")
        a("s_mov_b64 exec, vcc")
        if sleep: a(f"s_sleep {sleep}")
        retry(l0)
        a(f"{l1}:")
        exec_all()
    def ortree(regs, t):
        regs = list(regs)
        if len(regs) == 2: a(f"v_or_b32 v{t}, v{regs[0]}, v{regs[1]}"); return
        a(f"v_or3_b32 v{t}, v{regs[0]}, v{regs[1]}, v{regs[2]}"); regs = regs[3:]
        while len(regs) >= 2:
            a(f"v_or3_b32 v{t}, v{t}, v{regs[0]}, v{regs[1]}"); regs = regs[2:]
        if regs: a(f"v_or_b32 v{t}, v{t}, v{regs[0]}")
    def ppoll(addrs, kinds, out, sets, tmp):
        n = len(addrs); D = len(sets)
        l0 = lab("pp"); l1 = lab("ppd")
        def issue(b):
            for i, ad in enumerate(addrs): a(f"global_load_dwordx4 {vr(b+4*i,4)}, v{ad}, {sWS} sc1")
        for b in sets: issue(b)
        a(f"s_mov_b32 {SPIN}, 0")
        a(f"{l0}:")
        for b in sets:
            a(f"s_waitcnt vmcnt({(D-1)*n})")
            lo = []; full = []
            for i, kd in enumerate(kinds):
                for r in range(4):
                    if kd == "g16": a(f"v_xor_b32 v{out+4*i+r}, {TB[r]}, v{b+4*i+r}"); lo.append(out + 4*i + r)
                    elif r & 1: a(f"v_xor_b32 v{out+4*i+r}, {TAG}, v{b+4*i+r}"); full.append(out + 4*i + r)
                    else: a(f"v_mov_b32 v{out+4*i+r}, v{b+4*i+r}")
            ortree(lo, tmp)
            a(f"v_and_b32 v{tmp}, 0xff, v{tmp}")
            if full: a(f"v_or3_b32 v{tmp}, v{tmp}, v{full[0]}, v{full[1]}")
            a(f"v_cmp_ne_u32 vcc, 0, v{tmp}")
            a(f"s_cbranch_vccz {l1}")
            a("s_mov_b64 exec, vcc")
            issue(b)
        retry(l0)
        a(f"{l1}:")
        exec_all()
    def spoll(off_s, offs, sleep=2):
        n = len(offs)
        l0 = lab("sp"); l1 = lab("spd")
        a(f"s_mov_b32 {SPIN}, 0")
        a(f"s_add_u32 s64, s42, {off_s}"); a("s_addc_u32 s65, s43, 0")
        a(f"{l0}:")
        for i, o in enumerate(offs): a(f"s_load_dword s{80+i}, s[64:65], {o} glc")
        a("s_waitcnt lgkmcnt(0)")
        for i in range(n): a(f"s_xor_b32 s{80+i}, s{80+i}, {TAG}")
        for i in range(2, n, 2): a(f"s_or_b64 s[80:81], s[80:81], s[{80+i}:{81+i}]")
        a(f"s_cbranch_scc0 {l1}")
        a(f"s_sleep {sleep}")
        retry(l0)
        a(f"{l1}:")
    def lstore(stores, mask):
        l0 = lab("ls"); l1 = lab("lsd")
        exec_set(mask)
        a(f"s_cmp_eq_u32 {MODE}, 1"); a(f"s_cbranch_scc0 {l0}")
        for s_ in stores: a(s_)
        a(f"s_branch {l1}")
        a(f"{l0}:")
        for s_ in stores: a(s_ + (" sc1" if s_.startswith("global_store") else ""))
        a(f"{l1}:")
        exec_all()
    def chk_tags(tg, t):
        for r in tg: a(f"v_xor_b32 v{r}, {TAG}, v{r}")
        ortree(tg, t)
        a(f"v_cmp_ne_u32 vcc, 0, v{t}")
    def chk_g8(bases, t): chk_tags([b + o for b in bases for o in (1, 3)], t)
    def chk_g16(bases, t):
        for b in bases:
            for r in range(4): a(f"v_xor_b32 v{b+r}, {TB[r]}, v{b+r}")
        ortree([b + r for b in bases for r in range(4)], t)
        a(f"v_and_b32 v{t}, 0xff, v{t}")
        a(f"v_cmp_ne_u32 vcc, 0, v{t}")
    def tag_g16(b, vtag):
        for r in range(4): a(f"v_perm_b32 v{b+r}, v{b+r}, v{vtag}, {SEL[r]}")
    def lpoll(addr_v, off, t, val=1):
        l0 = lab("lp"); l1 = lab("lpd")
        a(f"s_mov_b32 {SPIN}, 0")
        a(f"{l0}:")
        a(f"ds_read_b32 v{t}, v{addr_v} offset:{off}")
        a("s_waitcnt lgkmcnt(0)")
        a(f"v_cmp_ne_u32 vcc, {val}, v{t}")
        a(f"s_cbranch_vccz {l1}")
        a("s_sleep 1")
        a(f"s_add_u32 {SPIN}, {SPIN}, 1")
        a(f"s_cmp_lt_u32 {SPIN}, {LLIM}")
        a(f"s_cbranch_scc1 {l0}")
        a(f"{l1}:")
    def consts():
        cm("launch tag = LCG(ws[0]); constants; v4..v7 = one-hot bf16 lane masks for the diagonal MFMA A operand")
        a("s_waitcnt lgkmcnt(0)")
        a(f"s_mul_i32 {TAG}, {TAG}, 0x19660d"); a(f"s_add_u32 {TAG}, {TAG}, 0x3c6ef35f")
        for r in range(4): a(f"s_mov_b32 {SEL[r]}, {0x07060500 + r:#x}")
        for r in range(4): a(f"s_bfe_u32 {TB[r]}, {TAG}, {(8 << 16) | (8*r):#x}")
        a(f"s_mov_b32 {M16}, 0xffff0000")
        a(f"s_mov_b32 {LOG2E}, {f2u(1.4426950408889634):#x}"); a(f"s_mov_b32 {SCALE}, {f2u(192 ** -0.5):#x}")
        a("v_and_b32 v28, 1, v1"); a("v_lshlrev_b32 v28, 4, v28"); a("v_mov_b32 v29, 0xffff"); a("v_lshlrev_b32 v29, v28, v29")
        a("v_lshrrev_b32 v28, 1, v3")
        for r in range(4):
            a(f"v_cmp_eq_u32 vcc, {r}, v28"); a(f"v_cndmask_b32 v{4+r}, 0, v29, vcc")
    def extract_g8(acc, out):
        a(f"v_permlane32_swap_b32 v{acc}, v{acc+2}")
        a(f"v_permlane32_swap_b32 v{acc+1}, v{acc+3}")
        a(f"v_add_f32_dpp v{out}, v{acc+2}, v{acc} {R8}")
        a(f"v_add_f32_dpp v{out+2}, v{acc+3}, v{acc+1} {R8}")
        a(f"v_mov_b32 v{out+1}, {TAG}"); a(f"v_mov_b32 v{out+3}, {TAG}")
    def extract2(accA, accB):
        for r in range(4): a(f"v_permlane32_swap_b32 v{accA+r}, v{accB+r}")
        for r in range(4): a(f"v_add_f32_dpp v{accA+r}, v{accB+r}, v{accA+r} {R8}")
    def red_waddr(d, t, stride, halfb):
        a(f"s_mul_i32 s10, s9, {stride}")
        a(f"v_lshl_add_u32 v{d}, v3, 5, s10"); a(f"v_and_b32 v{t}, 16, v1"); a(f"v_add_u32 v{d}, v{d}, v{t}")
        a(f"v_lshrrev_b32 v{t}, 5, v1"); a(f"v_mul_u32_u24 v{t}, {halfb}, v{t}"); a(f"v_add_u32 v{d}, v{d}, v{t}")
    def dbar(n):
        if debug:
            for _ in range(n): a("s_barrier")

    a(HEADER)
    a(f"; @launch grid=(256,1,1) block=(1024,1,1) lds={LDS_BYTES}")
    a('.amdgcn_target "amdgcn-amd-amdhsa--gfx950"')
    a(".text"); a(f".globl {NAME}_kernel"); a(".p2align 8"); a(f".type {NAME}_kernel,@function"); a(f"{NAME}_kernel:")
    if debug:
        for n in range(16): a(f"s_mov_b64 s[{70+2*n}:{71+2*n}], 0")
    stamp(0)
    a("s_cmp_ge_u32 s2, 256"); a("s_cbranch_scc1 L_exit")
    a("s_load_dwordx16 s[16:31], s[0:1], 0")
    a("s_load_dwordx8 s[32:39], s[0:1], 64")
    a("s_load_dwordx4 s[40:43], s[0:1], 96")
    cm("s3 wave, v1 lane, v2 u = lane>>3, v3 c = lane&7, s4 x, s5 i, s6 h, s7 s, s9 wave&7; LDS flags zeroed before the first barrier")
    a("v_lshrrev_b32 v2, 6, v0"); a("v_and_b32 v1, 63, v0")
    a("v_readfirstlane_b32 s3, v2")
    a("v_and_b32 v8, 31, v0"); a("v_lshlrev_b32 v8, 2, v8"); a("v_mov_b32 v9, 0")
    a(f"ds_write_b32 v8, v9 offset:{L_FLG}")
    a("v_lshrrev_b32 v2, 3, v1"); a("v_and_b32 v3, 7, v1")
    a("s_and_b32 s4, s2, 7"); a("s_lshr_b32 s5, s2, 3"); a("s_lshr_b32 s6, s2, 6"); a("s_lshl_b32 s7, s4, 2"); a("s_add_u32 s6, s6, s7"); a("s_and_b32 s7, s5, 7")
    a("s_and_b32 s9, s3, 7")
    a("s_mul_i32 s8, s6, 12582912"); a("s_mul_i32 s10, s7, 196608"); a("s_add_u32 s8, s8, s10"); a(f"s_add_u32 s8, s8, {28672*384}")
    a("s_mul_i32 s10, s9, 3072"); a("s_add_u32 s8, s8, s10")
    a("s_cmp_lt_u32 s3, 8"); a("s_cbranch_scc1 L_early")
    a("L_kvload:")
    cm("K/V addressing: 8 groups of 8 keys per wave, lane (u,c) holds 16 B chunk c of line t of key u; group order rotated by head")
    a("v_mul_u32_u24 v8, 384, v2"); a("v_lshl_add_u32 v8, v3, 4, v8")
    for g in range(8):
        a(f"s_add_u32 s10, s6, {g}"); a("s_and_b32 s10, s10, 7"); a("s_mul_i32 s10, s10, 24576"); a(f"v_add_u32 v{12+g}, s10, v8")
    a("s_lshl_b32 s10, s9, 2"); a("v_mov_b32 v9, s10"); a("v_mov_b32 v10, 1"); a("v_mov_b32 v11, 0")
    a("s_cmp_lt_u32 s3, 8"); a("s_cbranch_scc1 L_kvgo_v")
    a("s_waitcnt lgkmcnt(0)")
    stamp(3)
    a(f"s_load_dword {TAG}, {sWS}, 0")
    a("s_add_u32 s56, s18, s8"); a("s_addc_u32 s57, s19, 0")
    a("s_setprio 3")
    cm("K stream: at most 3 loads in flight per wave (keeps the CU's in-order return queue short for the hand-off traffic)")
    for n in range(24):
        if n >= 3: a("s_waitcnt vmcnt(2)")
        a(f"global_load_dwordx4 {vr(32+n*4,4)}, v{12+n//3}, s[56:57] offset:{(n%3)*128} {nt}")
        if n + 1 == 3: a("s_barrier")
        if n + 1 == ksig: a(f"ds_write_b32 v9, v10 offset:{L_KI}")
    stamp(1)
    a("s_setprio 0")
    consts()

    cm("=================== K wave: scores, local softmax ===================")
    a("v_mov_b32 v28, 0")
    lpoll(28, L_QF, 29, 6)
    stamp(2)
    a(f"ds_read_b32 v29, v28 offset:{L_MODE}")
    a("v_lshlrev_b32 v28, 4, v3")
    for t in range(3): a(f"ds_read_b128 {vr(16+4*t,4)}, v28 offset:{L_Q + 128*t}")
    a("s_waitcnt lgkmcnt(0)")
    a(f"v_readfirstlane_b32 {MODE}, v29")
    for g in range(8):
        a(f"s_waitcnt vmcnt({21-3*g})")
        accs = [8 + g, 30, 31]
        for r in range(4):
            for t in range(3):
                src2 = "0" if r == 0 else f"v{accs[t]}"
                a(f"v_dot2_f32_bf16 v{accs[t]}, v{32+(g*3+t)*4+r}, v{16+4*t+r}, {src2}")
        a(f"v_add_f32 v30, v30, v31"); a(f"v_add_f32 v{8+g}, v{8+g}, v30")
    S = list(range(8, 16))
    allred8(S)
    rnd(S)
    for r in S: a(f"v_mul_f32 v{r}, {SCALE}, v{r}")
    rnd(S)
    a("v_max3_f32 v16, v8, v9, v10"); a("v_max3_f32 v17, v11, v12, v13"); a("v_max3_f32 v16, v14, v15, v16"); a("v_max_f32 v16, v16, v17")
    allred_hi([16], [17], "max")
    for g in range(8): a(f"v_sub_f32 v{20+g}, v{8+g}, v16")
    for g in range(8): a(f"v_mul_f32 v{20+g}, {LOG2E}, v{20+g}")
    for g in range(8): a(f"v_exp_f32 v{20+g}, v{20+g}")
    for g in range(8): a(f"v_cvt_pk_bf16_f32 v{8+g}, v{20+g}, v{20+g}")
    a("s_lshl_b32 s10, s9, 8"); a("v_lshl_add_u32 v28, v2, 5, s10")
    a(f"ds_write_b128 v28, v[8:11] offset:{L_SC}"); a(f"ds_write_b128 v28, v[12:15] offset:{L_SC+16}")
    a("v_add_f32 v20, v20, v21"); a("v_add_f32 v22, v22, v23"); a("v_add_f32 v24, v24, v25"); a("v_add_f32 v26, v26, v27")
    a("v_add_f32 v20, v20, v22"); a("v_add_f32 v24, v24, v26"); a("v_add_f32 v18, v20, v24")
    a("s_lshl_b32 s10, s9, 2"); a("v_mov_b32 v28, s10"); a("v_mov_b32 v29, 1")
    a("s_waitcnt lgkmcnt(0)")
    a(f"ds_write_b32 v28, v29 offset:{L_PF}")
    allred_hi([18], [17])
    a(f"v_mov_b32 v17, {TAG}"); a(f"v_mov_b32 v19, {TAG}")
    a("s_lshl_b32 s10, s6, 6"); a("s_lshl_b32 s11, s7, 3"); a("s_add_u32 s11, s11, s10"); a("s_add_u32 s11, s11, s9"); a("s_lshl_b32 s11, s11, 4")
    a(f"s_add_u32 s11, s11, {WS_ST}"); a("v_mov_b32 v27, s11")
    lstore([f"global_store_dwordx4 v27, v[16:19], {sWS}"], 1)
    stamp(4)

    cm("---------- tail set-up: constants and addresses (v64..v99 persistent)")
    a("v_lshrrev_b32 v64, 4, v1")
    a(f"v_mov_b32 v65, {TAG}")
    cm("wave 6 of the gate/up workgroups gathers ga, sb, cb, gb, x for rows 32i..32i+31 -> LDS")
    a("s_cmp_lt_u32 s5, 20"); a("s_cbranch_scc0 L_pre_nog")
    a("s_cmp_eq_u32 s9, 6"); a("s_cbranch_scc0 L_pre_nog")
    a("s_lshl_b32 s10, s5, 5"); a("v_lshl_add_u32 v28, v3, 2, s10"); a("v_add_u32 v28, v28, v64")
    a("v_lshlrev_b32 v29, 1, v28")
    a(f"global_load_ushort v11, v29, {sX}")
    a("v_and_b32 v29, 8, v1"); a("v_mul_u32_u24 v29, 7680, v29"); a("v_lshl_add_u32 v28, v28, 3, v29")
    a(f"v_add_u32 v28, {WS_MOD + 1280*8}, v28")
    for n in range(1, 8): a(f"v_add_u32 v{28-n}, {(n//2)*5120 + (n%2)*30720}, v28")
    def gc_loads():
        for n in range(8): a(f"global_load_dwordx2 {vr(32+2*n,2)}, v{28-n}, {sWS} sc1")
    gpoll(gc_loads, lambda: chk_g8([32, 36, 40, 44], 30))
    for dst, b in ((8, 32), (10, 36), (9, 40), (12, 44)): a(f"v_add_f32 v{dst}, v{b}, v{b+2}")
    dppred([8, 9, 10, 12], (R8,))
    rnd([8, 9, 10, 12])
    a("v_add_f32 v9, 1.0, v9"); rnd([9])
    a("v_lshlrev_b32 v11, 16, v11")
    a("v_lshlrev_b32 v28, 4, v1")
    a(f"ds_write_b128 v28, v[8:11] offset:{L_GC}")
    a("v_lshlrev_b32 v28, 2, v1")
    a(f"ds_write_b32 v28, v12 offset:{L_GC+1024}")
    a("L_pre_nog:")
    cm("final-sum addresses (workgroup x == i%8, waves 0..3, 8 output columns each)")
    a("s_and_b32 s10, s9, 3")
    a("s_min_u32 s11, s5, 19"); a("s_lshl_b32 s12, s11, 2"); a("s_add_u32 s12, s12, s10")
    a("v_and_b32 v80, 1, v1")
    a("s_lshl_b32 s11, s10, 1"); a("v_add_u32 v76, s11, v80"); a("v_lshl_add_u32 v76, v64, 4, v76"); a("v_lshlrev_b32 v76, 2, v76")
    a("s_lshl_b32 s10, s12, 3"); a("v_lshl_add_u32 v28, v80, 2, s10"); a("v_add_u32 v28, v28, v64")
    a("v_lshlrev_b32 v75, 1, v28")
    a("s_lshl_b32 s10, s12, 5"); a("v_lshl_add_u32 v80, v80, 4, s10")
    a("v_lshrrev_b32 v28, 1, v1"); a("v_mul_u32_u24 v77, 2560, v28"); a("v_add_u32 v77, v77, v80")
    a(f"v_add_u32 v77, {WS_ZP}, v77"); a("v_add_u32 v78, 81920, v77"); a("v_add_u32 v79, 163840, v77")
    a("s_cmp_lt_u32 s5, 20"); a("s_cbranch_scc0 L_pre_d")
    cm("gate/up role (i<20): rows 32i..32i+31, columns 192x..192x+191; wave k<6 owns one 64-column line of gate (k<3) or up")
    a("s_cmp_lt_u32 s9, 3"); a("s_cselect_b32 s58, s28, s30"); a("s_cselect_b32 s59, s29, s31"); a("s_cselect_b32 s13, 0, 3"); a("s_cselect_b32 s14, 0, 64")
    a("s_sub_u32 s13, s9, s13"); a("s_min_u32 s13, s13, 2")
    a(f"s_mul_i32 s10, s5, {32*3072}"); a("s_mul_i32 s11, s4, 384"); a("s_add_u32 s10, s10, s11"); a("s_lshl_b32 s11, s13, 7"); a("s_add_u32 s10, s10, s11")
    a("s_add_u32 s58, s58, s10"); a("s_addc_u32 s59, s59, 0")
    a("v_and_b32 v28, 1, v2"); a("v_lshl_add_u32 v28, v28, 2, v64"); a("v_mul_u32_u24 v66, 3072, v28"); a("v_lshl_add_u32 v66, v3, 4, v66")
    for n in range(1, 4): a(f"v_add_u32 v{66+n}, {8*3072*n}, v66")
    a("s_lshl_b32 s10, s5, 7"); a(f"s_add_u32 s10, s10, {WS_YP}")
    a("v_mul_u32_u24 v82, 2560, v2"); a("v_lshl_add_u32 v82, v3, 4, v82"); a("v_add_u32 v82, s10, v82")
    a("v_add_u32 v83, 20480, v82"); a("v_add_u32 v84, 40960, v82")
    a(f"s_mul_i32 s10, s4, {GP_X}"); a("s_mul_i32 s11, s5, 1536"); a("s_add_u32 s10, s10, s11"); a("s_lshl_b32 s11, s13, 9"); a("s_add_u32 s10, s10, s11")
    a("s_add_u32 s10, s10, s14"); a(f"s_add_u32 s10, s10, {WS_GP}")
    a("v_lshrrev_b32 v28, 1, v3"); a("v_lshl_add_u32 v85, v28, 7, s10")
    a("v_and_b32 v28, 1, v3"); a("v_lshl_add_u32 v85, v28, 5, v85"); a("v_and_b32 v28, 16, v1"); a("v_add_u32 v85, v85, v28")
    a("v_lshrrev_b32 v28, 5, v1"); a(f"v_mul_u32_u24 v28, {GP_K}, v28"); a("v_add_u32 v86, v85, v28"); a(f"v_add_u32 v86, {GP_K}, v86")
    a("s_mul_i32 s10, s4, 6144"); a("s_lshl_b32 s11, s5, 4"); a("s_add_u32 s10, s10, s11"); a(f"s_add_u32 s10, s10, {WS_GS}")
    a("v_min_u32 v87, 11, v1"); a("v_lshl_add_u32 v87, v87, 9, s10")
    a("v_and_b32 v28, 1, v3"); a("v_lshl_add_u32 v72, v64, 1, v28"); a("v_lshlrev_b32 v72, 4, v72"); a("v_lshrrev_b32 v28, 1, v3"); a("v_lshl_add_u32 v72, v28, 2, v72")
    a("v_lshlrev_b32 v73, 4, v2")
    a("s_branch L_pre_gd")
    a("L_pre_d:")
    cm("down role (i>=20): hidden units 192x+16d..+15 (d = i-20); wave k<5 owns 128 output columns")
    a("s_sub_u32 s13, s5, 20")
    a("s_mul_i32 s10, s4, 192"); a("s_lshl_b32 s11, s13, 4"); a("s_add_u32 s10, s10, s11"); a("s_mul_i32 s10, s10, 1280")
    a("s_min_u32 s14, s9, 4"); a("s_lshl_b32 s11, s14, 8"); a("s_add_u32 s10, s10, s11")
    a("s_add_u32 s58, s32, s10"); a("s_addc_u32 s59, s33, 0")
    a("v_and_b32 v28, 15, v1"); a("v_mul_u32_u24 v66, 1280, v64"); a("v_lshl_add_u32 v66, v28, 4, v66")
    for n in range(1, 4): a(f"v_add_u32 v{66+n}, {5120*n}, v66")
    a(f"s_mul_i32 s10, s4, {GP_X}"); a("s_lshl_b32 s11, s13, 7"); a("s_add_u32 s10, s10, s11"); a(f"s_add_u32 s10, s10, {WS_GP}")
    a("v_lshl_add_u32 v29, v3, 4, s10")
    a("v_mul_u32_u24 v82, 1536, v2"); a("v_add_u32 v82, v82, v29"); a("v_add_u32 v83, 12288, v82")
    a("v_add_u32 v84, 24576, v82")
    a("s_mul_i32 s10, s4, 12"); a("s_add_u32 s10, s10, s13"); a("s_mul_i32 s10, s10, 2560"); a("s_lshl_b32 s11, s14, 9"); a("s_add_u32 s10, s10, s11"); a(f"s_add_u32 s10, s10, {WS_ZP}")
    a("v_lshl_add_u32 v85, v28, 5, s10"); a("v_and_b32 v28, 16, v1"); a("v_add_u32 v85, v85, v28")
    a("v_mov_b32 v86, v85")
    a("s_mul_i32 s10, s4, 6144"); a("s_lshl_b32 s11, s13, 9"); a("s_add_u32 s10, s10, s11"); a(f"s_add_u32 s10, s10, {WS_GS}")
    a("v_and_b32 v28, 31, v1"); a("v_lshl_add_u32 v87, v28, 4, s10")
    a("v_lshlrev_b32 v73, 4, v64"); a("v_and_b32 v28, 3, v3"); a("v_lshl_add_u32 v72, v28, 2, v73")
    a("L_pre_gd:")
    cm("wo role (i<30): rows 768x+256*(i/10)..+255, columns 64*(i%10)..+63; wave k owns 32 rows")
    a("s_mul_i32 s14, s5, 26"); a("s_lshr_b32 s14, s14, 8"); a("s_min_u32 s14, s14, 2")
    a("s_mul_i32 s15, s14, 10"); a("s_sub_u32 s15, s5, s15"); a("s_min_u32 s15, s15, 9")
    a("s_mul_i32 s10, s4, 3"); a("s_add_u32 s61, s10, s14")
    a("s_lshl_b32 s10, s61, 3"); a("s_add_u32 s10, s10, s9")
    a("s_lshl_b32 s11, s10, 10"); a(f"s_add_u32 s11, s11, {WS_OP}"); a("v_lshl_add_u32 v88, v1, 4, s11")
    a("s_mul_i32 s10, s10, 40960"); a("s_lshl_b32 s11, s15, 7"); a("s_add_u32 s10, s10, s11")
    a("s_add_u32 s56, s24, s10"); a("s_addc_u32 s57, s25, 0")
    a("v_mul_u32_u24 v70, 5120, v2"); a("v_lshl_add_u32 v70, v3, 4, v70")
    red_waddr(89, 90, WST, 256)
    a("s_and_b32 s10, s9, 1"); a("s_lshl_b32 s10, s10, 7"); a(f"v_mul_u32_u24 v90, {WST}, v3"); a("v_lshl_add_u32 v90, v2, 4, v90"); a("v_add_u32 v90, s10, v90")
    a("s_lshl_b32 s11, s14, 3"); a("s_add_u32 s11, s11, s4"); a("s_mul_i32 s11, s11, 2560"); a("s_add_u32 s10, s10, s11"); a("s_lshl_b32 s11, s15, 8"); a("s_add_u32 s10, s10, s11"); a(f"s_add_u32 s10, s10, {WS_YP}")
    a("v_lshl_add_u32 v91, v2, 4, s10")
    a("v_min_u32 v28, 5, v2"); a("s_mul_i32 s10, s9, 6"); a("v_add_u32 v28, s10, v28")
    a(f"v_mul_u32_u24 v92, {VST}, v3"); a("v_lshl_add_u32 v92, v28, 4, v92")
    a("s_mul_i32 s10, s6, 6144"); a("s_lshl_b32 s11, s7, 4"); a("s_add_u32 s10, s10, s11"); a(f"s_add_u32 s10, s10, {WS_OP}")
    a("v_lshl_add_u32 v94, v28, 7, s10")
    a("v_lshlrev_b32 v93, 2, v3")
    a("v_lshlrev_b32 v95, 4, v1")
    cm("wave 7: head-wide softmax statistics -> per-wave weights exp(m_w - M) / L")
    a("s_cmp_lg_u32 s9, 7"); a("s_cbranch_scc1 L_k_nostat")
    a("s_lshl_b32 s10, s6, 10"); a(f"s_add_u32 s10, s10, {WS_ST}"); a("v_lshl_add_u32 v28, v1, 4, s10")
    gpoll(lambda: a(f"global_load_dwordx4 v[20:23], v28, {sWS} sc1"), lambda: chk_g8([20], 24), sleep=2)
    a("v_mov_b32 v24, v20")
    allred8([24], "max"); allred_hi([24], [25], "max")
    a("v_sub_f32 v20, v20, v24"); a(f"v_mul_f32 v20, {LOG2E}, v20"); a("v_exp_f32 v20, v20"); a("v_mul_f32 v22, v22, v20")
    allred8([22]); allred_hi([22], [25])
    a("v_rcp_f32 v22, v22"); a("v_mul_f32 v20, v20, v22")
    a("v_lshlrev_b32 v28, 2, v3")
    a("s_lshl_b32 s10, s7, 3"); a("s_lshl_b64 exec, 0xff, s10")
    a(f"ds_write_b32 v28, v20 offset:{L_STT}")
    exec_all()
    stamp(5)
    a("L_k_nostat:")
    cm("wo tile is queued right behind the last V loads")
    a("v_mov_b32 v28, 0")
    lpoll(28, L_VI, 29, 8)
    a("s_cmp_lt_u32 s5, 30"); a("s_cbranch_scc0 L_nowo_ld")
    for r in range(4): a(f"global_load_dwordx4 {vr(32+4*r,4)}, v70, s[56:57] offset:{r*1280} {nt}")
    a("L_nowo_ld:")
    stamp(6)
    a("s_setprio 3")
    a("s_waitcnt lgkmcnt(0)")
    a("s_barrier")
    stamp(7)
    cm("=================== o partial of this workgroup (normalised) ===================")
    a(f"ds_read_b128 v[96:99], v92 offset:{L_VRED}")
    a(f"ds_read_b128 v[28:31], v92 offset:{L_VRED+768}")
    a(f"ds_read_b32 v22, v93 offset:{L_STT}")
    a("s_waitcnt lgkmcnt(0)")
    pkadd(96, 28)
    for r in (0, 2): a(f"v_pk_mul_f32 {vr(96+r,2)}, {vr(96+r,2)}, v[22:23] op_sel_hi:[1,0]")
    allred8([96, 97, 98, 99])
    tag_g16(96, 65)
    lstore([f"global_store_dwordx4 v94, v[96:99], {sWS}"], 0x0000010101010101)
    stamp(8)
    a("s_cmp_lt_u32 s5, 30"); a("s_cbranch_scc0 L_nobar3")

    cm("=================== o @ wo ===================")
    ppoll([88], ["g16"], 8, [16], 12)
    stamp(9)
    redscat([8])
    for o in range(2): a(f"v_cvt_pk_bf16_f32 v{8+o}, v{8+o}, v{8+o}")
    chain([(lambda A, n=n: abuild_h(A, 8 + (n & 1), n >> 1)) for n in range(4)], lambda n, A: mfma(20, A, 32 + 4*n, first=(n == 0)))
    exec_set(0xFF00FF0000FF00FF)
    a(f"ds_write_b128 v89, v[20:23] offset:{L_WRED}")
    exec_all()
    a("s_waitcnt lgkmcnt(0)")
    a("s_barrier")
    a("s_cmp_lt_u32 s9, 6"); a("s_cbranch_scc1 L_after_wo")
    a(f"ds_read_b128 v[24:27], v90 offset:{L_WRED}"); a(f"ds_read_b128 v[28:31], v90 offset:{L_WRED+256}")
    a("s_waitcnt lgkmcnt(0)")
    pkadd(24, 28)
    allred8([24, 25, 26, 27])
    tag_g16(24, 65)
    exec_set(0x0101010101010101)
    a(f"global_store_dwordx4 v91, v[24:27], {sWS} sc1")
    exec_all()
    stamp(10)
    a("L_after_wo:")
    a("s_barrier")
    a("L_nobar3:")
    cm("gate/up or down tile: loaded while the y partials travel")
    a("s_cmp_lt_u32 s5, 20"); a("s_cselect_b32 s10, 6, 5")
    a("s_cmp_lt_u32 s9, s10"); a("s_cbranch_scc0 L_nogd")
    for n in range(4): a(f"global_load_dwordx4 {vr(48+4*n,4)}, v{66+n}, s[58:59] {nt}")
    a("L_nogd:")
    a("s_cmp_lt_u32 s5, 20"); a("s_cbranch_scc0 L_d")
    PS = [8, 20, 44]

    cm("=================== gate/up partials: t=(x1*(1+cb))@W, c1=(1+cb)@W, c2=sb@W ; LN folded in later as rstd*(t-mean*c1)+c2 ===================")
    a(f"ds_read_b128 v[100:103], v95 offset:{L_GC}")
    a("s_cmp_eq_u32 s9, 6"); a("s_cbranch_scc1 L_g_poll")
    if debug:
        a("s_cmp_eq_u32 s9, 7"); a("s_cbranch_scc0 L_g_mm"); dbar(1); a("s_branch L_fin"); a("L_g_mm:")
    else:
        a("s_cmp_eq_u32 s9, 7"); a("s_cbranch_scc1 L_end")
    def gtemps(p, T):
        for n in range(4): a(f"v_mov_b32_dpp v{T+n}, v{p} row_newbcast:{2*n} row_mask:0xf bank_mask:0x3")
        for n in range(4): a(f"v_mov_b32_dpp v{T+n}, v{p} row_newbcast:{2*n+1} row_mask:0xf bank_mask:0xc")
    a("s_waitcnt lgkmcnt(0)")
    a("v_cvt_pk_bf16_f32 v8, v101, v101"); a("v_cvt_pk_bf16_f32 v9, v102, v102")
    gtemps(8, 104); gtemps(9, 108)
    for n in range(4): abuild(32 + 4*n, 104 + n)
    for n in range(4): abuild(112 + 4*n, 108 + n)
    a("s_waitcnt vmcnt(0)")
    stamp(12)
    for n in range(4):
        mfma(16, 32 + 4*n, 48 + 4*n, first=(n == 0)); mfma(20, 112 + 4*n, 48 + 4*n, first=(n == 0))
    extract2(16, 20)
    tag_g16(16, 65)
    lstore([f"global_store_dwordx4 v86, v[16:19], {sWS}"], 0x00FF00FF00FF00FF)
    stamp(13)
    a("s_barrier")
    a(f"ds_read_b128 v[104:107], v73 offset:{L_T}")
    a("s_waitcnt lgkmcnt(0)")
    chain([(lambda A, n=n: abuild(A, 104 + n)) for n in range(4)], lambda n, A: mfma(8, A, 48 + 4*n, first=(n == 0)))
    extract2(8, 12)
    tag_g16(8, 65)
    lstore([f"global_store_dwordx4 v85, v[8:11], {sWS}"], 0x00FF00FF)
    stamp(3)
    a("s_branch L_fin")
    a("L_g_poll:")
    a("s_waitcnt vmcnt(0)")
    ppoll([82, 83, 84], ["g16"] * 3, 32, PS[:pd_y], 56)
    stamp(11)
    a("s_waitcnt lgkmcnt(0)")
    sum3(32); swapscat(32); dppred([32], (R8,))
    a("v_fma_f32 v32, v32, v100, v103")
    a("v_mul_f32 v33, v32, v101")
    a("v_cvt_pk_bf16_f32 v33, v33, v33")
    a(f"ds_write_b32 v72, v33 offset:{L_T}")
    a("v_mul_f32 v34, v32, v32")
    a("v_lshlrev_b32 v58, 2, v1"); a(f"ds_write_b32 v58, v32 offset:{L_X1}")
    a("s_waitcnt lgkmcnt(0)")
    a("s_barrier")
    allred8([32, 34]); swapred([32, 34], [36, 37], (16, 32))
    a(f"v_mov_b32 v33, {TAG}"); a(f"v_mov_b32 v35, {TAG}")
    lstore([f"global_store_dwordx4 v87, v[32:35], {sWS}"], 0xfff)
    stamp(3)
    cm("=================== out = x1 + gb * sum(z partials) ===================")
    a("L_fin:")
    if not debug:
        a("s_cmp_eq_u32 s7, s4"); a("s_cbranch_scc0 L_end")
        a("s_cmp_lt_u32 s9, 4"); a("s_cbranch_scc0 L_end")
    a(f"ds_read_b32 v58, v76 offset:{L_X1}")
    a(f"ds_read_b32 v59, v76 offset:{L_GC+1024}")
    a("s_waitcnt vmcnt(0) lgkmcnt(0)")
    a("s_barrier")
    if debug:
        a("s_cmp_eq_u32 s7, s4"); a("s_cbranch_scc0 L_end")
        a("s_cmp_lt_u32 s9, 4"); a("s_cbranch_scc0 L_end")
    ppoll([77, 78, 79], ["g16"] * 3, 32, PS[:1], 56)
    stamp(14)
    sum3(32); swapscat(32); dppred([32], (R8, R4, X2))
    a("v_fma_f32 v32, v32, v59, v58")
    a("v_cvt_pk_bf16_f32 v32, v32, v32")
    exec_set(0x0003000300030003)
    a(f"global_store_short v75, v32, {sOUT}")
    stamp(15)
    a("s_cmp_lg_u32 s12, 0"); a("s_cbranch_scc1 L_fin_done")
    cm("every workgroup has consumed the tag seed by now: advance it for the next launch")
    exec_set(1)
    a("v_mov_b32 v60, 0")
    a(f"global_store_dword v60, v65, {sWS}")
    a("L_fin_done:")
    exec_all()
    a("s_branch L_end")

    cm("=================== GEGLU + down partials ===================")
    a("L_d:")
    a("s_cmp_lt_u32 s9, 5"); a("s_cbranch_scc0 L_d_poll")
    a("s_waitcnt vmcnt(0)")
    a("s_barrier")
    a("s_barrier")
    a(f"ds_read_b128 v[104:107], v73 offset:{L_T}")
    a("s_waitcnt lgkmcnt(0)")
    chain([(lambda A, n=n: abuild(A, 104 + n)) for n in range(4)], lambda n, A: mfma(8, A, 48 + 4*n, first=(n == 0)))
    tag_g16(8, 65)
    exec_set(0xFFFFFFFF)
    a(f"global_store_dwordx4 v85, v[8:11], {sWS} sc1")
    exec_all()
    stamp(3)
    a("s_branch L_end")
    a("L_d_poll:")
    cm("waves 5,6,7 gather t, c1, c2; unused rows 20..23 / stat slots 20..31 are filled with tagged zeros first")
    a("s_sub_u32 s10, s9, 5"); a(f"s_mul_i32 s11, s10, {GP_K}")
    for ld in range(3): a(f"v_add_u32 v{82+ld}, s11, v{82+ld}")
    a("s_waitcnt vmcnt(0)")
    for r in range(4): a(f"v_mov_b32 v{24+r}, {TB[r]}")
    lstore([f"global_store_dwordx4 v84, v[24:27], {sWS}"], 0xFFFFFFFF00000000)
    a("s_cmp_eq_u32 s9, 5"); a("s_cbranch_scc1 L_d_main")
    a("s_lshl_b32 s10, s9, 2"); a("v_lshl_add_u32 v58, v1, 3, s10")
    ppoll([82, 83, 84], ["g16"] * 3, 8, [112], 60)
    sum3(8); swapscat(8); dppred([8], (R8,))
    a(f"ds_write_b32 v58, v8 offset:{L_C - 24}")
    stamp(13)
    a("s_waitcnt lgkmcnt(0)")
    a("s_barrier")
    dbar(1)
    a("s_branch L_end")
    a("L_d_main:")
    a("v_mov_b32 v28, 0"); a(f"v_mov_b32 v29, {TAG}"); a("v_mov_b32 v30, 0"); a(f"v_mov_b32 v31, {TAG}")
    lstore([f"global_store_dwordx4 v87, v[28:31], {sWS}"], 0xFFF0000000000000)
    a(f"s_mov_b32 s10, {f2u(0.044715):#x}"); a(f"s_mov_b32 s11, {f2u(1/640):#x}"); a(f"v_mov_b32 v59, {f2u(1e-5):#x}")
    a("v_lshlrev_b32 v58, 3, v1")
    ppoll([82, 83, 84, 87], ["g16"] * 3 + ["g8"], 8, [112, 40, 88][:pd_g], 60)
    a("s_barrier")
    a(f"ds_read_b64 v[56:57], v58 offset:{L_C}")
    stamp(11)
    dppred([20, 22], (X1,))
    pkadd(8, 12)
    dppred([20, 22], (X2,))
    pkadd(8, 16)
    dppred([20, 22], (HM,))
    a("v_permlane32_swap_b32 v8, v10"); a("v_permlane32_swap_b32 v9, v11")
    dppred([20, 22], (R8,))
    a("v_add_f32 v8, v8, v10"); a("v_add_f32 v9, v9, v11")
    a("v_mov_b32 v21, v20"); a("v_mov_b32 v23, v22")
    a("v_permlane16_swap_b32 v8, v9")
    a("v_permlane16_swap_b32 v20, v21"); a("v_permlane16_swap_b32 v22, v23")
    a("v_add_f32 v8, v8, v9")
    a("v_add_f32 v20, v20, v21"); a("v_add_f32 v22, v22, v23")
    a("v_mul_f32 v20, s11, v20"); a("v_fma_f32 v22, v22, s11, v59")
    a(f"v_add_f32_dpp v8, v8, v8 {R8}")
    a("v_fma_f32 v22, -v20, v20, v22"); a("v_max_f32 v22, v22, v59"); a("v_rsq_f32 v58, v22")
    a("s_waitcnt lgkmcnt(0)")
    a("v_fma_f32 v8, -v20, v56, v8")
    a("v_fma_f32 v8, v8, v58, v57")
    cm("gelu_tanh(g) = g / (1 + exp(-2*sqrt(2/pi)*(g + 0.044715 g^3)))")
    CC2 = f2u(-2.0 * np.sqrt(2.0 / np.pi) * 1.4426950408889634)
    a("v_mul_f32 v9, v8, v8"); a(f"v_mul_f32 v10, {CC2:#x}, v8")
    a("v_fma_f32 v9, v9, s10, 1.0")
    a(f"v_mul_f32_dpp v11, v8, v8 row_shl:4 {DPP}")
    a("v_mul_f32 v9, v9, v10"); a("v_exp_f32 v9, v9"); a("v_add_f32 v9, 1.0, v9"); a("v_rcp_f32 v9, v9")
    exec_set(0x000F000F000F000F)
    a("v_mul_f32 v11, v11, v9"); a("v_cvt_pk_bf16_f32 v11, v11, v11")
    a(f"ds_write_b32 v72, v11 offset:{L_T}")
    exec_all()
    a("s_waitcnt lgkmcnt(0)")
    a("s_barrier")
    a("s_branch L_end")

    cm("=================== V wave: stream V, p @ V through the diagonal-A MFMA ===================")
    a("L_kvgo_v:")
    lpoll(9, L_KI, 29)
    a("s_add_u32 s56, s20, s8"); a("s_addc_u32 s57, s21, 0")
    a("s_setprio 3")
    for n in range(24):
        if cap <= n < 24 - vfree: a(f"s_waitcnt vmcnt({cap-1})")
        a(f"global_load_dwordx4 {vr(32+n*4,4)}, v{12+n//3}, s[56:57] offset:{(n%3)*128} {nt}")
    exec_set(1); a(f"ds_add_u32 v11, v10 offset:{L_VI}"); exec_all()
    stamp(1)
    red_waddr(0, 28, VST, 768)
    a("s_lshl_b32 s10, s9, 2"); a("v_mov_b32 v28, s10")
    lpoll(28, L_PF, 29)
    stamp(2)
    a("s_lshl_b32 s10, s9, 8"); a("v_lshl_add_u32 v28, v2, 5, s10")
    a(f"ds_read_b128 v[8:11], v28 offset:{L_SC}"); a(f"ds_read_b128 v[12:15], v28 offset:{L_SC+16}")
    a("s_waitcnt lgkmcnt(0)")
    for g in range(8):
        abuild(28, 8 + g)
        a(f"s_waitcnt vmcnt({21-3*g})")
        for t in range(3): mfma(16 + 4*t, 28, 32 + (g*3+t)*4, first=(g == 0))
    stamp(3)
    exec_set(0xFF00FF0000FF00FF)
    for t in range(3): a(f"ds_write_b128 v0, {vr(16+4*t,4)} offset:{L_VRED + 256*t}")
    exec_all()
    a("s_waitcnt lgkmcnt(0)")
    a("s_barrier")
    if debug:
        a("s_lshl_b32 s10, s9, 6"); a("v_mov_b32 v0, s10")
        for n in range(16): a(f"v_mov_b32 v{104+n}, s{70+2*n}")
        for n in range(4): a(f"ds_write_b128 v0, {vr(104+4*n,4)} offset:{L_STAMP+16*n}")
        a("s_waitcnt lgkmcnt(0)")
    a("s_endpgm")

    cm("=================== early phase (waves 0..7) ===================")
    a("L_early:")
    a("s_setprio 3")
    a("s_cmp_lt_u32 s9, 4"); a("s_cbranch_scc0 L_e_q")
    cm("waves 0..3: w_mod piece (b<240): rows 160*(b&3)..+159, columns 64*(b>>2)..+63 -> LDS")
    a("s_and_b32 s12, s2, 3"); a("s_lshr_b32 s13, s2, 2")
    a(f"s_mul_i32 s10, s12, {160*7680}"); a("s_lshl_b32 s11, s13, 7"); a("s_add_u32 s10, s10, s11")
    a("s_mul_i32 s11, s9, 61440"); a("s_add_u32 s14, s10, s11")
    a("v_mul_u32_u24 v16, 7680, v2"); a("v_lshl_add_u32 v16, v3, 4, v16")
    for j in range(1, 5): a(f"v_add_u32 v{16+j}, {245760*j}, v16")
    a("s_lshl_b32 s61, s9, 10"); a(f"s_add_u32 s61, s61, {L_MW}")
    a("s_mul_i32 s10, s12, 320"); a("v_lshl_add_u32 v8, v1, 1, s10"); a("v_min_u32 v9, 31, v1"); a("v_lshl_add_u32 v9, v9, 1, s10")
    a("s_waitcnt lgkmcnt(0)")
    stamp(15)
    a(f"s_load_dword {TAG}, {sWS}, 0")
    a("s_add_u32 s56, s36, s14"); a("s_addc_u32 s57, s37, 0")
    a("s_cmp_eq_u32 s9, 0"); a("s_cbranch_scc0 L_e_noc")
    a(f"global_load_ushort v10, v8, {sC}"); a(f"global_load_ushort v11, v8, {sC} offset:128"); a(f"global_load_ushort v12, v9, {sC} offset:256")
    a("L_e_noc:")
    a("s_cmp_lt_u32 s2, 240"); a("s_cbranch_scc0 L_e_nomod")
    for j in range(5):
        a(f"s_add_u32 m0, s61, {4096*j}"); a(f"global_load_lds_dwordx4 v{16+j}, s[56:57] {nt}")
    a("L_e_nomod:")
    a("s_barrier")
    a("s_setprio 1")
    a("s_cmp_eq_u32 s9, 1"); a("s_cbranch_scc0 L_e_nox")
    a("v_lshlrev_b32 v8, 2, v1")
    for n in range(5): a(f"global_load_dword v{10+n}, v8, {sX} offset:{256*n}")
    a("s_mul_i32 s10, s7, 160"); a("v_min_u32 v9, 39, v1"); a("v_lshl_add_u32 v8, v9, 2, s10")
    a(f"global_load_dword v15, v8, {sX}")
    a("L_e_nox:")
    consts()
    a("v_mov_b32 v30, 0"); a("v_mov_b32 v31, 1")
    a("s_cmp_eq_u32 s9, 0"); a("s_cbranch_scc1 L_h0")
    a("s_cmp_eq_u32 s9, 1"); a("s_cbranch_scc1 L_e_w1")
    a("s_waitcnt vmcnt(0)")
    a("L_e_w1:")
    a("s_waitcnt vmcnt(6)")
    exec_set(1); a(f"ds_add_u32 v30, v31 offset:{L_FM}"); exec_all()
    a("s_waitcnt vmcnt(0)")
    stamp(4)
    a("s_cmp_eq_u32 s9, 1"); a("s_cbranch_scc1 L_h1")
    a("s_cmp_eq_u32 s9, 2"); a("s_cbranch_scc1 L_qg")
    cm("wave 3: publish which XCD this workgroup runs on")
    a("s_getreg_b32 s10, hwreg(HW_REG_XCC_ID, 0, 4)"); a("v_mov_b32 v22, s10"); a(f"v_mov_b32 v23, {TAG}")
    a("s_lshl_b32 s10, s4, 11"); a("s_lshl_b32 s11, s5, 6"); a("s_add_u32 s10, s10, s11"); a(f"s_add_u32 s10, s10, {WS_PL}"); a("v_mov_b32 v24, s10")
    exec_set(1); a(f"global_store_dwordx2 v24, v[22:23], {sWS} sc1"); exec_all()
    a("s_branch L_qg")
    cm("waves 4..7: wq piece: rows 80s..80s+79, columns of head h -> LDS")
    a("L_e_q:")
    a("s_sub_u32 s12, s9, 4")
    a(f"s_mul_i32 s10, s7, {80*12288}"); a("s_mul_i32 s11, s6, 384"); a("s_add_u32 s15, s10, s11")
    a("s_lshr_b32 s10, s12, 1"); a("s_lshl_b32 s10, s10, 4"); a("s_and_b32 s11, s12, 1"); a("s_add_u32 s10, s10, s11"); a("s_mul_i32 s10, s10, 12288")
    a("s_add_u32 s15, s15, s10")
    a("v_mul_u32_u24 v16, 24576, v2"); a("v_lshl_add_u32 v16, v3, 4, v16")
    for j in range(1, 3): a(f"v_add_u32 v{16+j}, {32*12288*j}, v16")
    a("s_mul_i32 s62, s12, 3072")
    a("s_waitcnt lgkmcnt(0)")
    stamp(15)
    a(f"s_load_dword {TAG}, {sWS}, 0")
    a("s_add_u32 s58, s22, s15"); a("s_addc_u32 s59, s23, 0")
    for j in range(3):
        if j == 2: a("s_cmp_lt_u32 s12, 2"); a("s_cbranch_scc0 L_e_q2")
        for t in range(3):
            a(f"s_add_u32 m0, s62, {L_QW + 4*3072*j + 896*t}"); a(f"global_load_lds_dwordx4 v{16+j}, s[58:59] offset:{128*t} {nt}")
    a("L_e_q2:")
    a("s_barrier")
    a("s_setprio 1")
    consts()
    a("v_mov_b32 v30, 0"); a("v_mov_b32 v31, 1")
    a("s_waitcnt vmcnt(0)")
    exec_set(1); a(f"ds_add_u32 v30, v31 offset:{L_FQ}"); exec_all()
    stamp(4)
    a("s_branch L_qg")
    cm("wave 0: silu(c) (compensated exp2 argument, corrected division) and the mod partial")
    a("L_h0:")
    a("s_cmp_lt_u32 s2, 240"); a("s_cbranch_scc0 L_hdone")
    a("s_waitcnt vmcnt(5)")
    L2E_HI = np.float32(1.4426950408889634); L2E_LO = np.float32(1.4426950408889634 - float(L2E_HI))
    a(f"s_mov_b32 s10, {f2u(-L2E_HI):#x}"); a(f"s_mov_b32 s11, {f2u(-L2E_LO):#x}"); a(f"s_mov_b32 s14, {f2u(0.6931471805599453):#x}")
    for n in range(3): a(f"v_lshlrev_b32 v{10+n}, 16, v{10+n}")
    cm("below -87 silu is (almost) -0: clamp the value there; above +128 exp(-c) is 0: clamp only the exponent input")
    for n in range(3): a(f"v_max_f32 v{10+n}, {f2u(-87.0):#x}, v{10+n}")
    for n in range(3): a(f"v_min_f32 v{24+n}, {f2u(128.0):#x}, v{10+n}")
    for n in range(3): a(f"v_mul_f32 v{16+n}, s10, v{24+n}")
    for n in range(3): a(f"v_fma_f32 v{20+n}, v{24+n}, s10, -v{16+n}")
    for n in range(3): a(f"v_fma_f32 v{20+n}, v{24+n}, s11, v{20+n}")
    for n in range(3): a(f"v_exp_f32 v{16+n}, v{16+n}")
    for n in range(3): a(f"v_mul_f32 v{20+n}, s14, v{20+n}")
    for n in range(3): a(f"v_fma_f32 v{16+n}, v{16+n}, v{20+n}, v{16+n}")
    for n in range(3): a(f"v_add_f32 v{16+n}, 1.0, v{16+n}")
    for n in range(3): a(f"v_rcp_f32 v{20+n}, v{16+n}")
    for n in range(3): a(f"v_mul_f32 v{24+n}, v{10+n}, v{20+n}")
    for n in range(3): a(f"v_fma_f32 v{16+n}, -v{24+n}, v{16+n}, v{10+n}")
    for n in range(3): a(f"v_fma_f32 v{24+n}, v{16+n}, v{20+n}, v{24+n}")
    for n in range(3): a(f"v_cvt_pk_bf16_f32 v{12+n}, v{24+n}, v{24+n}")
    a("v_lshlrev_b32 v8, 2, v2"); a("v_lshlrev_b32 v9, 4, v1")
    P = list(range(112, 128)) + [16, 17, 18, 19]
    for i in range(20): a(f"ds_bpermute_b32 v{P[i]}, v8, v{12 + i // 8} offset:{32*(i%8)}")
    a("s_waitcnt vmcnt(0)")
    stamp(4)
    lpoll(30, L_FM, 29, 3)
    for i in range(20): a(f"ds_read_b128 {vr(32+4*i,4)}, v9 offset:{L_MW + 1024*i}")
    a("v_lshlrev_b32 v8, 6, v3")
    a("v_and_b32 v10, 16, v1"); a("v_lshl_add_u32 v8, v10, 1, v8")
    a("v_lshrrev_b32 v10, 5, v1"); a("v_lshl_add_u32 v8, v10, 4, v8")
    a("s_mul_i32 s10, s12, 30720"); a("s_lshl_b32 s11, s13, 9"); a("s_add_u32 s10, s10, s11"); a(f"s_add_u32 s10, s10, {WS_MOD}")
    a("v_add_u32 v8, s10, v8")
    a("s_waitcnt lgkmcnt(0)")
    chain([(lambda A, i=i: abuild(A, P[i])) for i in range(20)], lambda i, A: mfma(20, A, 32 + 4*i, first=(i == 0)))
    extract_g8(20, 24)
    exec_set(0x00FF00FF00FF00FF)
    a(f"global_store_dwordx4 v8, v[24:27], {sWS} sc1")
    exec_all()
    stamp(13)
    a("s_branch L_hdone")

    cm("wave 1: LN(x), h = LN*(1+ca)+sa for rows 80s..80s+79, q partial")
    a("L_h1:")
    for n in range(5):
        a(f"v_lshlrev_b32 v{16+2*n}, 16, v{10+n}"); a(f"v_and_b32 v{17+2*n}, {M16}, v{10+n}")
    a("v_add_f32 v10, v16, v17")
    for n in range(2, 10): a(f"v_add_f32 v10, v10, v{16+n}")
    allred8([10]); allred_hi([10], [11])
    a(f"v_mul_f32 v10, {f2u(1/640):#x}, v10")
    for n in range(10): a(f"v_sub_f32 v{16+n}, v{16+n}, v10")
    a("v_mul_f32 v11, v16, v16")
    for n in range(1, 10): a(f"v_fmac_f32 v11, v{16+n}, v{16+n}")
    allred8([11]); allred_hi([11], [12])
    a(f"v_mul_f32 v11, {f2u(1/640):#x}, v11")
    rnd([10, 11])
    a(f"v_add_f32 v11, {f2u(1e-5):#x}, v11"); rnd([11])
    a("v_sqrt_f32 v11, v11"); rnd([11])
    a("v_rcp_f32 v11, v11")
    a("v_lshlrev_b32 v12, 16, v15"); a(f"v_and_b32 v13, {M16}, v15")
    for r in (12, 13): a(f"v_sub_f32 v{r}, v{r}, v10")
    rnd([12, 13])
    for r in (12, 13): a(f"v_mul_f32 v{r}, v{r}, v11")
    rnd([12, 13])
    a("s_mul_i32 s10, s7, 640"); a(f"s_add_u32 s10, s10, {WS_MOD + 2560}"); a("v_lshl_add_u32 v16, v9, 4, s10")
    for kq in range(1, 4): a(f"v_add_u32 v{16+kq}, {30720*kq}, v16")
    lpoll(30, L_FQ, 29, 4)
    a("v_lshlrev_b32 v8, 2, v2"); a("v_lshlrev_b32 v9, 4, v1")
    for n in range(15): a(f"ds_read_b128 {vr(64+4*n,4)}, v9 offset:{L_QW + n*1024}")
    def ma_loads():
        for kq in range(4):
            a(f"global_load_dwordx4 {vr(32+8*kq,4)}, v{16+kq}, {sWS} offset:-2560 sc1")
            a(f"global_load_dwordx4 {vr(36+8*kq,4)}, v{16+kq}, {sWS} offset:2560 sc1")
        a(f"global_load_dwordx2 v[14:15], v26, {sWS} sc1")
    a("s_lshl_b32 s10, s4, 11"); a(f"s_add_u32 s10, s10, {WS_PL}"); a("v_and_b32 v26, 31, v1"); a("v_lshl_add_u32 v26, v26, 6, s10")
    a("s_mul_i32 s10, s7, 640"); a(f"s_add_u32 s10, s10, {WS_MOD}")
    spoll("s10", [kq*30720 + mat*5120 + e*8 + 4 for kq in range(4) for mat in range(2) for e in (0, 79)])
    gpoll(ma_loads, lambda: chk_tags([33 + 2*n for n in range(16)] + [15], 20), sleep=4)
    stamp(13)
    a("s_getreg_b32 s10, hwreg(HW_REG_XCC_ID, 0, 4)")
    a("v_cmp_ne_u32 vcc, s10, v14")
    a("s_cmp_eq_u64 vcc, 0"); a(f"s_cselect_b32 {MODE}, {0 if force_slow else 1}, 0")
    a(f"v_mov_b32 v14, {MODE}"); a(f"ds_write_b32 v30, v14 offset:{L_MODE}")
    for r in range(4):
        a(f"v_add_f32 v{20+r}, v{32+2*r}, v{40+2*r}"); a(f"v_add_f32 v24, v{48+2*r}, v{56+2*r}"); a(f"v_add_f32 v{20+r}, v{20+r}, v24")
    rnd([20, 21, 22, 23])
    for o in range(2): a(f"v_add_f32 v{22+o}, 1.0, v{22+o}")
    rnd([22, 23])
    for o in range(2): a(f"v_mul_f32 v{12+o}, v{12+o}, v{22+o}")
    rnd([12, 13])
    for o in range(2): a(f"v_add_f32 v{12+o}, v{12+o}, v{20+o}")
    for o in range(2): a(f"v_cvt_pk_bf16_f32 v{12+o}, v{12+o}, v{12+o}")
    for i in range(10): a(f"ds_bpermute_b32 v{32+i}, v8, v{12 + i % 2} offset:{32*(i//2)}")
    a("s_waitcnt lgkmcnt(0)")
    def qm(base):
        def f(ii, A):
            for t in range(3): mfma(16 + 4*t, A, 64 + (3*ii+t)*4, first=(base + ii == 0))
        return f
    chain([(lambda A, i=i: abuild(A, 32 + i)) for i in range(5)], qm(0), A0=44)
    a("s_nop 7")
    for n in range(15): a(f"ds_read_b128 {vr(64+4*n,4)}, v9 offset:{L_QW + (15+n)*1024}")
    a("s_mul_i32 s10, s6, 6144"); a("s_lshl_b32 s11, s7, 4"); a("s_add_u32 s11, s10, s11"); a(f"s_add_u32 s11, s11, {WS_QP}")
    a("v_lshl_add_u32 v8, v3, 8, s11"); a("v_and_b32 v10, 16, v1"); a("v_lshl_add_u32 v8, v10, 3, v8")
    a("v_add_u32 v11, 4096, v8")
    a("v_lshrrev_b32 v10, 5, v1"); a("v_lshl_add_u32 v8, v10, 11, v8")
    a(f"v_mov_b32 v10, {TAG}")
    a("s_waitcnt lgkmcnt(0)")
    chain([(lambda A, i=i: abuild(A, 37 + i)) for i in range(5)], qm(5), A0=44)
    extract2(16, 20); extract2(24, 52)
    for r in list(range(16, 20)) + list(range(24, 28)): a(f"v_add_u32 v{r}, 0x80, v{r}")
    tag_g16(16, 10); tag_g16(24, 10)
    lstore([f"global_store_dwordx4 v8, v[16:19], {sWS}", "s_mov_b32 exec_hi, 0", f"global_store_dwordx4 v11, v[24:27], {sWS}"], 0x00FF00FF00FF00FF)
    stamp(14)
    a(f"ds_write_b32 v30, v31 offset:{L_QPUB}")
    a("s_branch L_hdone")
    cm("waves 2..7: sum the 8 q partials of this head -> packed bf16 q in LDS")
    a("L_qg:")
    lpoll(30, L_QPUB, 29)
    a("s_sub_u32 s12, s9, 2")
    a("v_mov_b32 v28, 0")
    a("s_mul_i32 s10, s6, 6144"); a("s_lshl_b32 s11, s12, 10"); a("s_add_u32 s10, s10, s11"); a(f"s_add_u32 s10, s10, {WS_QP}")
    a("v_lshl_add_u32 v12, v1, 4, s10")
    gpoll(lambda: a(f"global_load_dwordx4 v[8:11], v12, {sWS} sc1"), lambda: chk_g16([8], 13), sleep=2)
    redscat([8])
    a("v_cvt_pk_bf16_f32 v8, v8, v9")
    a("s_lshl_b32 s10, s12, 6"); a("v_and_b32 v9, 60, v1"); a("v_add_u32 v9, s10, v9"); a("v_mov_b32 v10, 1")
    a(f"ds_write_b32 v9, v8 offset:{L_Q}")
    a("s_waitcnt lgkmcnt(0)")
    exec_set(1); a(f"ds_add_u32 v28, v10 offset:{L_QF}"); exec_all()
    stamp(14)
    a("L_hdone:")
    a("s_setprio 0")
    a("s_waitcnt vmcnt(0)")
    a("s_branch L_kvload")

    a("L_end:")
    if debug:
        a("s_waitcnt lgkmcnt(0)")
        a("L_dbgw:"); a("s_sleep 16"); a("s_memrealtime s[10:11]"); a("s_waitcnt lgkmcnt(0)"); a("s_sub_u32 s10, s10, s70"); a("s_cmp_lt_u32 s10, 4000"); a("s_cbranch_scc1 L_dbgw")
        a("s_waitcnt vmcnt(0)")
        a("s_lshl_b32 s10, s9, 6"); a("v_mov_b32 v0, s10")
        for n in range(4): a(f"ds_read_b128 {vr(8+4*n,4)}, v0 offset:{L_STAMP+16*n}")
        a("s_waitcnt lgkmcnt(0)")
        a("s_lshl_b32 s10, s2, 4"); a("s_add_u32 s10, s10, s3"); a("s_lshl_b32 s10, s10, 6"); a(f"s_add_u32 s10, s10, {WS_STAMP}")
        a("v_mov_b32 v0, s10")
        for n in range(16): a(f"v_mov_b32 v{104+n}, s{70+2*n}")
        exec_set(1)
        for n in range(4): a(f"global_store_dwordx4 v0, {vr(104+4*n,4)}, {sWS} offset:{16*n}")
        for n in range(4): a(f"global_store_dwordx4 v0, {vr(8+4*n,4)}, {sWS} offset:{16*n-512}")
    a("L_exit:")
    a("s_endpgm")
    a('.section .rodata,"a"'); a(".p2align 6"); a(f".amdhsa_kernel {NAME}_kernel")
    a(".amdhsa_next_free_vgpr 128"); a(".amdhsa_next_free_sgpr 102"); a(".amdhsa_accum_offset 128")
    a(".amdhsa_group_segment_fixed_size 0"); a(".amdhsa_kernarg_size 112"); a(".amdhsa_user_sgpr_count 2")
    a(".amdhsa_user_sgpr_kernarg_segment_ptr 1"); a(".amdhsa_system_sgpr_workgroup_id_x 1")
    a(".amdhsa_float_denorm_mode_32 3")
    a(".end_amdhsa_kernel")
    return a.finish()

if __name__ == "__main__":
    open("kf.s", "w").write(gen())
    open("kfd.s", "w").write(gen(debug=True))
```
